```python
import torch

def _softmax(x, axis=-1):
    return torch.softmax(x, dim=axis)
def _gelu(x):
    return torch.nn.functional.gelu(x, approximate="tanh")
def _silu(x):
    return torch.nn.functional.silu(x)
def _sigmoid(x):
    return torch.sigmoid(x)
def _layernorm(x, axis=-1, eps=1e-5):
    m = x.mean(dim=axis, keepdim=True)
    v = x.var(dim=axis, keepdim=True, unbiased=False)
    return (x - m) / torch.sqrt(v + eps)
def _scatter_add(tgt, idx, src, axis=0):
    return tgt.clone().index_add_(axis, idx, src)
def _segment_sum(src, seg, n):
    out = torch.zeros((n,) + src.shape[1:], dtype=src.dtype)
    return out.index_add_(0, seg, src)
def _pad(x, pw):
    flat = tuple(v for pair in reversed(pw) for v in pair)
    return torch.nn.functional.pad(x, flat)

kernel_name = 'gather_scatter__edge_featured_mpnn_gatedgcn__graph'

def setup_inputs():

    _w = (lambda a: (lambda t: t.to(torch.bfloat16) if t.is_floating_point() else t)(torch.as_tensor(a)))
    N, deg, D, De = 50000, 16, 64, max(4, 1)
    E = N * deg
    return {
        "x": _w((lambda *s: torch.randn(*s, dtype=torch.bfloat16) * 0.4)(N, D)),
        "e_attr": _w((lambda *s: torch.randn(*s, dtype=torch.bfloat16) * 0.8)(E, De)),
        "src": _w((lambda lo, hi, *s: torch.randint(lo, hi, s))(0, N, E).to(torch.int64)),
        "dst": _w((lambda lo, hi, *s: torch.randint(lo, hi, s))(0, N, E).to(torch.int64)),
        "w_a": _w((lambda *s: torch.randn(*s, dtype=torch.bfloat16) * 0.8)(D, D)),
        "w_b": _w((lambda *s: torch.randn(*s, dtype=torch.bfloat16) * 0.4)(D, D)),
        "w_c": _w((lambda *s: torch.randn(*s, dtype=torch.bfloat16) * 0.8)(De, D)),
        "w_u": _w((lambda *s: torch.randn(*s, dtype=torch.bfloat16) * 0.05)(D, D)),
        "w_v": _w((lambda *s: torch.randn(*s, dtype=torch.bfloat16) * 0.05)(D, D)),
    }

def reference(x, e_attr, src, dst, w_a, w_b, w_c, w_u, w_v):
    N, D = x.shape
    hv = x @ w_v
    g = x[dst] @ w_a + x[src] @ w_b + e_attr @ w_c
    eta = _sigmoid(g)
    denom = _segment_sum(eta, dst, N) + 1e-6
    eta_n = eta / denom[dst]
    agg = _segment_sum(eta_n * hv[src], dst, N)
    z = x @ w_u + agg
    relu_z = torch.where(z > 0, z, 0 * z)
    return x + relu_z
```

```python
class Asm:
    def __init__(self):
        self.lines = []
        self.nlabel = 0
    def __call__(self, s, comment=None):
        for l in s.strip('\n').split('\n'):
            l = l.strip()
            if l:
                self.lines.append('    ' + l)
        if comment:
            self.lines[-1] += '    ; ' + comment
    def label(self, name):
        self.lines.append(name + ':')
    def newlabel(self, stem='L'):
        self.nlabel += 1
        return f'{stem}_{self.nlabel}'
    def comment(self, s):
        self.lines.append('    ; ' + s)
    def text(self):
        return '\n'.join(self.lines) + '\n'

class Regs:
    def __init__(self, start, limit, kind='v'):
        self.next = start; self.limit = limit; self.kind = kind; self.high = start
        self.names = {}
    def alloc(self, n=1, align=1, name=None):
        a = (self.next + align - 1) // align * align
        assert a + n <= self.limit, f'out of {self.kind} registers: want {n} at {a}, limit {self.limit}'
        self.next = a + n
        self.high = max(self.high, self.next)
        if name: self.names[name] = (a, n)
        return a

def vr(base, n=1):
    return f'v{base}' if n == 1 else f'v[{base}:{base+n-1}]'
def sr(base, n=1):
    return f's{base}' if n == 1 else f's[{base}:{base+n-1}]'

def srd(a, s, base_lo, base_hi, nbytes, add_off=0):
    if add_off:
        a(f's_add_u32 s{s}, s{base_lo}, {add_off:#x}')
        a(f's_addc_u32 s{s+1}, s{base_hi}, 0')
    else:
        a(f's_mov_b32 s{s}, s{base_lo}')
        a(f's_mov_b32 s{s+1}, s{base_hi}')
    a(f's_mov_b32 s{s+2}, {nbytes:#x}')
    a(f's_mov_b32 s{s+3}, 0x00020000')

def wave_incl_scan(a, x):
    for sh in (1, 2, 4, 8):
        a('s_nop 1')
        a(f'v_add_u32_dpp v{x}, v{x}, v{x} row_shr:{sh} row_mask:0xf bank_mask:0xf bound_ctrl:0')
    a('s_nop 1')
    a(f'v_add_u32_dpp v{x}, v{x}, v{x} row_bcast:15 row_mask:0xa bank_mask:0xf')
    a('s_nop 1')
    a(f'v_add_u32_dpp v{x}, v{x}, v{x} row_bcast:31 row_mask:0xc bank_mask:0xf')
    a('s_nop 1')

def kernel_header(a, name):
    a.lines.append(f'.globl {name}')
    a.lines.append('.p2align 8')
    a.lines.append(f'.type {name},@function')
    a.lines.append(f'{name}:')

def kernel_descriptor(name, nvgpr, nsgpr, accum=None):
    nv = (nvgpr + 7) // 8 * 8
    acc = accum if accum is not None else min(256, (nvgpr + 3) // 4 * 4)
    return f'''.amdhsa_kernel {name}
  .amdhsa_next_free_vgpr {nvgpr}
  .amdhsa_next_free_sgpr {nsgpr}
  .amdhsa_accum_offset {acc}
  .amdhsa_group_segment_fixed_size 0
  .amdhsa_kernarg_size 96
  .amdhsa_user_sgpr_count 2
  .amdhsa_user_sgpr_kernarg_segment_ptr 1
  .amdhsa_system_sgpr_workgroup_id_x 1
  .amdhsa_float_denorm_mode_32 3
.end_amdhsa_kernel
'''
```

```python
from asmlib import *
from layout import *

NAME = 'gs_main_kernel'
NWAVE = 8
CAP = 512
CAPR = CAP + 64
LDS_WF = 0
LDS_OHT = 16384
LDS_WAVE0 = 18432
PW_REC = 0
PW_OWN = CAPR * 16
PW_ST = PW_OWN + CAP * 4
PW = PW_ST + 2048
LDS_TOTAL = LDS_WAVE0 + NWAVE * PW
PAD_SRC = 0x7FFFFF00
PAD_DL16 = 31 * 16
NLOG2E = 0xbfb8aa3b

PIPELINED = False


def gen():
    a = Asm()
    kernel_header(a, NAME)
    SRD_X, SRD_OUT, SRD_WF, SRD_CELL, SRD_REC = 8, 12, 16, 20, 24
    sWave, sWin, sT0, sT1, sT2, sTot, sC0, sNrec, sNg, sG = 32, 33, 34, 35, 36, 37, 38, 39, 40, 41
    sEx = 42
    sLoMask = 44
    sHiMask = 46
    sEx2 = 48
    a(f's_cmp_ge_u32 s2, {NWIN // NWAVE}')
    a('s_cbranch_scc1 L_main_end', 'surplus workgroups leave before touching memory')
    a('s_load_dwordx2 s[4:5], s[0:1], 0', 'x')
    a('s_load_dwordx2 s[6:7], s[0:1], 88', 'd_ws')
    a('s_load_dwordx2 s[28:29], s[0:1], 72', 'd_out')
    a('s_waitcnt lgkmcnt(0)')
    srd(a, SRD_X, 4, 5, N * D * 2)
    srd(a, SRD_OUT, 28, 29, N * D * 2)
    srd(a, SRD_WF, 6, 7, 65536, WS_WF)
    srd(a, SRD_CELL, 6, 7, NTILE * NBIN * 4, WS_CELL)
    srd(a, SRD_REC, 6, 7, E * 16, WS_REC)
    a(f's_mov_b32 s{sLoMask}, -1')
    a(f's_mov_b32 s{sLoMask+1}, 0')
    a(f's_mov_b32 s{sHiMask}, 0')
    a(f's_mov_b32 s{sHiMask+1}, -1')

    V = Regs(1, 256)
    vLane = V.alloc(); vM = V.alloc(); vH16 = V.alloc(); vOHL = V.alloc(); vSC = V.alloc(); vSR = V.alloc()
    vRA = V.alloc(); vWL = V.alloc(); vSold = V.alloc(); vOne = V.alloc(); vZero = V.alloc(); vOwnA = V.alloc()
    vT = V.alloc(); vT2 = V.alloc(); vT3 = V.alloc(); vT4 = V.alloc()
    vR = V.alloc(2, 2)
    DEN = [V.alloc(16, 4), V.alloc(16, 4)]
    NUM = [V.alloc(16, 4), V.alloc(16, 4)]
    G = [V.alloc(16, 4), V.alloc(16, 4)]
    H = [V.alloc(16, 4), V.alloc(16, 4)]
    AB = [[V.alloc(4, 4), V.alloc(4, 4)], [V.alloc(4, 4), V.alloc(4, 4)]]
    XA = [V.alloc(16, 4), V.alloc(16, 4)]
    OH = [V.alloc(4, 4), V.alloc(4, 4)]
    S = [V.alloc(4, 4), V.alloc(4, 4)]
    WS = [V.alloc(4, 4) for _ in range(4)]

    a(f'v_and_b32 v{vLane}, 63, v0')
    a(f'v_lshrrev_b32 v{vT}, 6, v0')
    a(f'v_and_b32 v{vM}, 31, v0')
    a(f'v_readfirstlane_b32 s{sWave}, v{vT}')
    a(f'v_bfe_u32 v{vT}, v0, 5, 1', 'h = lane >> 5')
    a(f'v_lshlrev_b32 v{vH16}, 4, v{vT}')
    a(f'v_lshlrev_b32 v{vOHL}, 9, v{vT}')
    a(f'v_add_u32 v{vOHL}, {LDS_OHT}, v{vOHL}')
    a(f'v_lshlrev_b32 v{vWL}, 4, v{vLane}')
    a(f's_mul_i32 s{sT0}, s{sWave}, {PW}')
    a(f's_add_u32 s{sT0}, s{sT0}, {LDS_WAVE0}', 'LDS base of this wave\'s private area')
    a(f's_lshl_b32 s{sWin}, s2, 3')
    a(f's_add_u32 s{sWin}, s{sWin}, s{sWave}', 'window index')
    a(f'v_lshlrev_b32 v{vRA}, 4, v{vM}')
    a(f'v_add_u32 v{vRA}, s{sT0}, v{vRA}')
    if PW_REC: a(f'v_add_u32 v{vRA}, {PW_REC}, v{vRA}')
    a(f'v_lshlrev_b32 v{vOwnA}, 2, v{vLane}')
    a(f'v_add_u32 v{vOwnA}, s{sT0}, v{vOwnA}')
    a(f'v_add_u32 v{vOwnA}, {PW_OWN}, v{vOwnA}')
    a(f'v_lshlrev_b32 v{vSR}, 6, v{vM}')
    a(f'v_add_u32 v{vSR}, v{vSR}, v{vH16}')
    a(f'v_add_u32 v{vSR}, s{sT0}, v{vSR}')
    a(f'v_add_u32 v{vSR}, {PW_ST}, v{vSR}')
    a(f'v_lshrrev_b32 v{vT}, 4, v{vM}')
    a(f'v_lshlrev_b32 v{vSC}, 4, v{vT}')
    a(f'v_bfe_u32 v{vT}, v{vM}, 2, 1')
    a(f'v_lshl_add_u32 v{vSC}, v{vT}, 3, v{vSC}')
    a(f'v_bfe_u32 v{vT}, v{vM}, 3, 1')
    a(f'v_lshl_add_u32 v{vSC}, v{vT}, 2, v{vSC}')
    a(f'v_and_b32 v{vT}, 3, v{vM}')
    a(f'v_add_u32 v{vSC}, v{vSC}, v{vT}')
    a(f'v_lshlrev_b32 v{vSC}, 1, v{vSC}')
    a(f'v_add_u32 v{vSC}, s{sT0}, v{vSC}')
    a(f'v_add_u32 v{vSC}, {PW_ST}, v{vSC}')
    a(f'v_mov_b32 v{vSold}, v{vSC}')
    a(f'v_mov_b32 v{vOne}, 0x3f80')
    a(f'v_mov_b32 v{vZero}, 0')

    a(f'v_lshlrev_b32 v{vT}, 5, v0')
    a(f'buffer_load_dwordx4 {vr(XA[0],4)}, v{vT}, s[{SRD_WF}:{SRD_WF+3}], 0 offen')
    a(f'buffer_load_dwordx4 {vr(XA[0]+4,4)}, v{vT}, s[{SRD_WF}:{SRD_WF+3}], 0 offen offset:16')
    vC = [XA[1] + r for r in range(4)]
    a(f'v_lshlrev_b32 v{vT2}, 13, v{vLane}', 'tile row stride 8 KiB')
    a(f's_lshl_b32 s{sT1}, s{sWin}, 2')
    for r in range(4):
        a(f'buffer_load_dword v{vC[r]}, v{vT2}, s[{SRD_CELL}:{SRD_CELL+3}], s{sT1} offen')
        if r < 3: a(f's_add_u32 s{sT1}, s{sT1}, {64 * NBIN * 4}')
    a(f'v_lshrrev_b32 v{vT}, 8, v0', 's')
    a(f'v_bfe_u32 v{vT2}, v0, 7, 1', 'h')
    a(f'v_lshlrev_b32 v{vT3}, 4, v{vT}')
    a(f'v_lshl_add_u32 v{vT3}, v{vT2}, 2, v{vT3}')
    a(f'v_bfe_u32 v{vT}, v0, 1, 1', 'q >> 1')
    a(f'v_lshl_add_u32 v{vT3}, v{vT}, 3, v{vT3}')
    a(f'v_and_b32 v{vT}, 1, v0', 'q & 1')
    a(f'v_lshl_add_u32 v{vT3}, v{vT}, 1, v{vT3}', 'node of slot 2q')
    a(f'v_bfe_u32 v{vT2}, v0, 2, 5', 'dl')
    a(f'v_sub_u32 v{vT2}, v{vT2}, v{vT3}', 'dl - node0: 0 -> low half, 1 -> high half')
    a(f'v_cmp_eq_u32_e64 s[{sEx}:{sEx+1}], 0, v{vT2}')
    a(f'v_cmp_eq_u32_e64 s[{sEx2}:{sEx2+1}], 1, v{vT2}')
    a(f'v_mov_b32 v{vT}, 0x3f80')
    a(f'v_mov_b32 v{vT3}, 0x3f800000')
    a('s_nop 1')
    a(f'v_cndmask_b32_e64 v{vT}, 0, v{vT}, s[{sEx}:{sEx+1}]')
    a(f'v_cndmask_b32_e64 v{vT3}, 0, v{vT3}, s[{sEx2}:{sEx2+1}]')
    a(f'v_or_b32 v{vT}, v{vT}, v{vT3}')
    a(f'v_lshlrev_b32 v{vT2}, 2, v0')
    a(f'ds_write_b32 v{vT2}, v{vT} offset:{LDS_OHT}')
    for i in range(4): a(f'v_mov_b32 v{S[0]+i}, 0')
    a(f'v_lshlrev_b32 v{vT}, 5, v{vLane}')
    a(f'v_add_u32 v{vT}, s{sT0}, v{vT}')
    a(f'v_add_u32 v{vT}, {PW_ST}, v{vT}')
    a(f'ds_write_b128 v{vT}, {vr(S[0],4)}')
    a(f'ds_write_b128 v{vT}, {vr(S[0],4)} offset:16')
    a('s_waitcnt vmcnt(4)')
    a(f'v_lshlrev_b32 v{vT}, 5, v0')
    a(f'ds_write_b128 v{vT}, {vr(XA[0],4)} offset:{LDS_WF}')
    a(f'ds_write_b128 v{vT}, {vr(XA[0]+4,4)} offset:{LDS_WF+16}')
    a('s_waitcnt lgkmcnt(0)')
    a('s_barrier')

    a('s_waitcnt vmcnt(0)')
    vCnt = [V.alloc() for _ in range(4)]
    vPos = [V.alloc() for _ in range(4)]
    vGi = [V.alloc() for _ in range(4)]
    vX = V.alloc(); vSum = V.alloc()
    for r in range(4):
        a(f'v_lshrrev_b32 v{vCnt[r]}, 16, v{vC[r]}')
        a(f'v_and_b32 v{vGi[r]}, 0xffff, v{vC[r]}')
        a(f'v_add_u32 v{vT}, {64*r}, v{vLane}')
        a(f'v_mul_u32_u24 v{vT}, {TILE}, v{vT}')
        a(f'v_add_u32 v{vGi[r]}, v{vGi[r]}, v{vT}', 'global index of the cell\'s first record')
    a(f'v_add_u32 v{vSum}, v{vCnt[0]}, v{vCnt[1]}')
    a(f'v_add3_u32 v{vSum}, v{vSum}, v{vCnt[2]}, v{vCnt[3]}')
    a(f'v_mov_b32 v{vX}, v{vSum}')
    wave_incl_scan(a, vX)
    a(f'v_readlane_b32 s{sTot}, v{vX}, 63')
    a(f'v_sub_u32 v{vPos[0]}, v{vX}, v{vSum}')
    for r in range(1, 4):
        a(f'v_add_u32 v{vPos[r]}, v{vPos[r-1]}, v{vCnt[r-1]}')

    XW = XA[0]
    def load_window_rows():
        for i in range(16): a(f'v_mov_b32 v{XW+i}, 0')
        a(f's_mul_i32 s{sT1}, s{sWin}, {WIN*128}')
        a(f'v_lshl_add_u32 v{vT}, v{vM}, 7, v{vH16}')
        a(f'v_cmp_gt_u32_e64 s[{sEx}:{sEx+1}], {WIN}, v{vM}')
        a(f's_mov_b64 exec, s[{sEx}:{sEx+1}]')
        for s in range(4):
            a(f'buffer_load_dwordx4 {vr(XW+4*s,4)}, v{vT}, s[{SRD_X}:{SRD_X+3}], s{sT1} offen offset:{32*s}')
        a('s_mov_b64 exec, -1')
    def load_frags(mat):
        for t in range(2):
            for s in range(4):
                a(f's_mov_b32 s{sT2}, {((mat*2+t)*4+s)*1024}')
                a(f'buffer_load_dwordx4 {vr(H[t]+4*s,4)}, v{vWL}, s[{SRD_WF}:{SRD_WF+3}], s{sT2} offen')
    load_window_rows()
    load_frags(2)
    a('s_waitcnt vmcnt(0)')
    for t in range(2):
        for s in range(4):
            c = '0' if s == 0 else vr(G[t], 16)
            a(f'v_mfma_f32_32x32x16_bf16 {vr(G[t],16)}, {vr(XW+4*s,4)}, {vr(H[t]+4*s,4)}, {c}')
    a('s_nop 7'); a('s_nop 7')
    for t in range(2):
        for sp in range(2):
            for q in range(4):
                a(f'v_cvt_pk_bf16_f32 v{AB[t][sp]+q}, v{G[t]+8*sp+2*q}, v{G[t]+8*sp+2*q+1}')
    a('s_nop 1')
    a(f's_mov_b64 exec, s[{sHiMask}:{sHiMask+1}]')
    a(f'v_lshlrev_b32 v{vT}, 3, v{vM}')
    for t in range(2):
        a(f's_mov_b32 s{sT2}, {WS_WC + 256*t}')
        a(f'buffer_load_dwordx2 {vr(AB[t][1]+2,2)}, v{vT}, s[{SRD_WF}:{SRD_WF+3}], s{sT2} offen')
    a('s_mov_b64 exec, -1')
    for t in range(2):
        for i in range(16):
            a(f'v_mov_b32 v{DEN[t]+i}, 0')
            a(f'v_mov_b32 v{NUM[t]+i}, 0')
    a(f's_mov_b32 s{sC0}, 0')

    a.label('L_chunk')
    a(f's_sub_u32 s{sNrec}, s{sTot}, s{sC0}')
    a(f's_min_u32 s{sNrec}, s{sNrec}, {CAP}', 'records in this chunk')
    vK = V.alloc(); vEnd = V.alloc(); vAd = V.alloc(); vDa = V.alloc()
    a(f's_add_u32 s{sT1}, s{sC0}, {CAP}')
    for r in range(4):
        lf = a.newlabel('L_fill'); le = a.newlabel('L_fill_end')
        a(f'v_sub_u32 v{vK}, s{sC0}, v{vPos[r]}')
        a(f'v_max_i32 v{vK}, 0, v{vK}', 'first in-chunk record of the cell')
        a(f'v_sub_u32 v{vEnd}, s{sT1}, v{vPos[r]}')
        a(f'v_min_i32 v{vEnd}, v{vEnd}, v{vCnt[r]}', 'one past the last in-chunk record')
        a(f'v_subrev_u32 v{vAd}, s{sC0}, v{vPos[r]}')
        a(f'v_add_u32 v{vAd}, v{vAd}, v{vK}')
        a(f'v_lshlrev_b32 v{vAd}, 2, v{vAd}')
        a(f'v_add_u32 v{vAd}, s{sT0}, v{vAd}')
        a(f'v_add_u32 v{vAd}, {PW_OWN}, v{vAd}')
        a(f'v_add_u32 v{vDa}, v{vGi[r]}, v{vK}')
        a.label(lf)
        a(f'v_cmp_lt_i32 vcc, v{vK}, v{vEnd}')
        a(f's_and_saveexec_b64 s[{sEx}:{sEx+1}], vcc')
        a(f's_cbranch_execz {le}')
        a(f'ds_write_b32 v{vAd}, v{vDa}')
        a(f'v_add_u32 v{vK}, 1, v{vK}')
        a(f'v_add_u32 v{vAd}, 4, v{vAd}')
        a(f'v_add_u32 v{vDa}, 1, v{vDa}')
        a(f's_mov_b64 exec, s[{sEx}:{sEx+1}]')
        a(f's_branch {lf}')
        a.label(le)
        a(f's_mov_b64 exec, s[{sEx}:{sEx+1}]')
    a('s_waitcnt lgkmcnt(0)')
    NJ = CAPR // 64
    GB = G[0]
    quads = [G[0] + 4*j for j in range(4)] + [G[1] + 4*j for j in range(4)] + [H[0]]
    owns = [H[1] + j for j in range(NJ)]
    for j in range(NJ):
        a(f'ds_read_b32 v{owns[j]}, v{vOwnA} offset:{256*j}')
    a('s_waitcnt lgkmcnt(0)')
    for j in range(NJ):
        q = quads[j]
        a(f'v_mov_b32 v{q}, {PAD_SRC:#x}')
        a(f'v_mov_b32 v{q+1}, {PAD_DL16}')
        a(f'v_mov_b32 v{q+2}, 0')
        a(f'v_mov_b32 v{q+3}, 0')
        a(f'v_lshlrev_b32 v{owns[j]}, 4, v{owns[j]}')
    for j in range(NJ):
        sk = a.newlabel('L_gsk')
        a(f'v_add_u32 v{vT}, {64*j}, v{vLane}')
        a(f'v_cmp_gt_u32 vcc, s{sNrec}, v{vT}')
        a(f's_and_saveexec_b64 s[{sEx}:{sEx+1}], vcc')
        a(f's_cbranch_execz {sk}')
        a(f'buffer_load_dwordx4 {vr(quads[j],4)}, v{owns[j]}, s[{SRD_REC}:{SRD_REC+3}], 0 offen')
        a.label(sk)
        a(f's_mov_b64 exec, s[{sEx}:{sEx+1}]')
    a(f'v_lshlrev_b32 v{vT}, 4, v{vLane}')
    a(f'v_add_u32 v{vT}, s{sT0}, v{vT}')
    a('s_waitcnt vmcnt(0)')
    for j in range(NJ):
        a(f'ds_write_b128 v{vT}, {vr(quads[j],4)} offset:{PW_REC + 1024*j}')
    a('s_waitcnt lgkmcnt(0)')
    a(f's_add_u32 s{sNg}, s{sNrec}, 31')
    a(f's_lshr_b32 s{sNg}, s{sNg}, 5', 'groups in this chunk')

    a(f's_mov_b32 s{sG}, 0')
    a(f'v_mov_b32 v{vT4}, v{vRA}', 'running record address')
    a('s_cmp_eq_u32 s%d, 0' % sNg)
    a('s_cbranch_scc1 L_groups_done')
    a.label('L_group')
    a(f'ds_read_b64 {vr(vR,2)}, v{vT4}')
    a('s_waitcnt lgkmcnt(0)')
    a(f'v_add_u32 v{vT}, v{vR}, v{vH16}')
    for s in range(4):
        a(f'buffer_load_dwordx4 {vr(XA[0]+4*s,4)}, v{vT}, s[{SRD_X}:{SRD_X+3}], 0 offen offset:{32*s}')
    a(f'v_add_u32 v{vT2}, v{vR+1}, v{vOHL}')
    a(f'ds_read_b128 {vr(OH[0],4)}, v{vT2}')
    a(f'ds_read_b128 {vr(OH[1],4)}, v{vT2} offset:1024')
    a(f's_mov_b64 exec, s[{sHiMask}:{sHiMask+1}]')
    a(f'ds_read_b64 {vr(OH[1]+2,2)}, v{vT4} offset:8')
    a(f's_mov_b64 exec, s[{sLoMask}:{sLoMask+1}]')
    a(f'v_lshl_add_u32 v{vT3}, v{vR+1}, 2, v{vSC}', 'selection-tile address of this lane\'s edge')
    a(f'ds_write_b16 v{vSold}, v{vZero}')
    a(f'ds_write_b16 v{vT3}, v{vOne}')
    a(f'v_mov_b32 v{vSold}, v{vT3}')
    a('s_mov_b64 exec, -1')
    a(f'ds_read_b128 {vr(S[0],4)}, v{vSR}')
    a(f'ds_read_b128 {vr(S[1],4)}, v{vSR} offset:32')
    a('s_waitcnt vmcnt(0) lgkmcnt(0)')
    for t in range(2):
        a(f'v_mfma_f32_32x32x16_bf16 {vr(G[t],16)}, {vr(OH[0],4)}, {vr(AB[t][0],4)}, 0')
        a(f'v_mfma_f32_32x32x16_bf16 {vr(G[t],16)}, {vr(OH[1],4)}, {vr(AB[t][1],4)}, {vr(G[t],16)}')
        for mat, dstr in ((0, G[t]), (1, H[t])):
            for s in range(4):
                a(f'ds_read_b128 {vr(WS[s],4)}, v{vWL} offset:{LDS_WF + ((mat*2+t)*4+s)*1024}')
            a('s_waitcnt lgkmcnt(0)')
            for s in range(4):
                c = '0' if (mat == 1 and s == 0) else vr(dstr, 16)
                a(f'v_mfma_f32_32x32x16_bf16 {vr(dstr,16)}, {vr(XA[0]+4*s,4)}, {vr(WS[s],4)}, {c}')
        a('s_nop 7'); a('s_nop 7')
        g, h = G[t], H[t]
        for i in range(16): a(f'v_mul_f32 v{g+i}, {NLOG2E:#x}, v{g+i}')
        for i in range(16): a(f'v_exp_f32 v{g+i}, v{g+i}')
        for i in range(16): a(f'v_add_f32 v{g+i}, 1.0, v{g+i}')
        for i in range(16): a(f'v_rcp_f32 v{g+i}, v{g+i}')
        for i in range(16): a(f'v_mul_f32 v{h+i}, v{g+i}, v{h+i}')
        for q in range(8): a(f'v_cvt_pk_bf16_f32 v{g+q}, v{g+2*q}, v{g+2*q+1}')
        for q in range(8): a(f'v_cvt_pk_bf16_f32 v{h+q}, v{h+2*q}, v{h+2*q+1}')
        a('s_nop 1')
        for sp in range(2):
            a(f'v_mfma_f32_32x32x16_bf16 {vr(DEN[t],16)}, {vr(S[sp],4)}, {vr(g+4*sp,4)}, {vr(DEN[t],16)}')
        for sp in range(2):
            a(f'v_mfma_f32_32x32x16_bf16 {vr(NUM[t],16)}, {vr(S[sp],4)}, {vr(h+4*sp,4)}, {vr(NUM[t],16)}')
    a(f'v_add_u32 v{vT4}, 512, v{vT4}')
    a(f's_add_u32 s{sG}, s{sG}, 1')
    a(f's_cmp_lt_u32 s{sG}, s{sNg}')
    a('s_cbranch_scc1 L_group')
    a.label('L_groups_done')
    a(f's_add_u32 s{sC0}, s{sC0}, {CAP}')
    a(f's_cmp_lt_u32 s{sC0}, s{sTot}')
    a('s_cbranch_scc1 L_chunk')

    load_window_rows()
    load_frags(3)
    XR = XA[1]
    a(f's_mul_i32 s{sT1}, s{sWin}, {WIN*128}')
    a(f'v_lshlrev_b32 v{vT2}, 2, v{vM}')
    a(f'v_lshl_add_u32 v{vT2}, v{vH16}, 5, v{vT2}', '4h rows * 128 B = h16 * 32')
    for rho in range(13):
        a(f'buffer_load_dword v{XR+rho}, v{vT2}, s[{SRD_X}:{SRD_X+3}], s{sT1} offen offset:{128*(8*(rho>>2) + (rho&3))}')
    a('s_waitcnt vmcnt(0)')
    for t in range(2):
        for s in range(4):
            c = '0' if s == 0 else vr(G[t], 16)
            a(f'v_mfma_f32_32x32x16_bf16 {vr(G[t],16)}, {vr(XW+4*s,4)}, {vr(H[t]+4*s,4)}, {c}')
    a('s_nop 7'); a('s_nop 7')
    a(f'v_mov_b32 v{vT}, 0x358637bd', '1e-6')
    vcm = sEx
    for rho in range(13):
        for t in range(2):
            d, nmr, u = DEN[t] + rho, NUM[t] + rho, G[t] + rho
            a(f'v_add_f32 v{d}, v{vT}, v{d}')
            a(f'v_rcp_f32 v{d}, v{d}')
            a('s_nop 0')
            a(f'v_fma_f32 v{u}, v{nmr}, v{d}, v{u}', 'z')
            a(f'v_mul_f32 v{d}, 0, v{u}')
            a(f'v_cmp_lt_f32_e64 s[{vcm}:{vcm+1}], 0, v{u}')
            a('s_nop 1')
            a(f'v_cndmask_b32_e64 v{u}, v{d}, v{u}, s[{vcm}:{vcm+1}]', 'where(z > 0, z, 0 * z)')
        a(f'v_lshlrev_b32 v{vT3}, 16, v{XR+rho}')
        a(f'v_and_b32 v{XR+rho}, 0xffff0000, v{XR+rho}')
        a(f'v_add_f32 v{vT3}, v{vT3}, v{G[0]+rho}')
        a(f'v_add_f32 v{XR+rho}, v{XR+rho}, v{G[1]+rho}')
        a(f'v_cvt_pk_bf16_f32 v{XR+rho}, v{vT3}, v{XR+rho}')
    for rho in range(13):
        if rho == 12: a(f's_mov_b64 exec, s[{sLoMask}:{sLoMask+1}]')
        a(f'buffer_store_dword v{XR+rho}, v{vT2}, s[{SRD_OUT}:{SRD_OUT+3}], s{sT1} offen offset:{128*(8*(rho>>2) + (rho&3))}')
    a.label('L_main_end')
    a('s_endpgm')
    info = dict(grid=NWIN // NWAVE, block=64 * NWAVE, lds=LDS_TOTAL)
    return a.text(), kernel_descriptor(NAME, V.high, 64), info


if __name__ == '__main__':
    t, d, info = gen()
    print(info, 'lines', t.count('\n'))
    print(d)
```

```python
from asmlib import *
from layout import *

NAME = 'gs_partition_kernel'
LDS = 32768 + 64


def gen():
    a = Asm()
    kernel_header(a, NAME)
    a('s_load_dwordx4 s[4:7], s[0:1], 8', 'e_attr, src')
    a('s_load_dwordx2 s[8:9], s[0:1], 24', 'dst')
    a('s_load_dwordx2 s[10:11], s[0:1], 88', 'd_ws')
    a(f's_cmp_gt_u32 s2, {NTILE}')
    a('s_cbranch_scc1 L_part_end', 'surplus workgroups leave before touching memory')
    a('s_waitcnt lgkmcnt(0)')
    a(f's_cmp_eq_u32 s2, {NTILE}')
    a('s_cbranch_scc1 L_part_weights')
    SRD_EA, SRD_SRC, SRD_DST, SRD_REC, SRD_CELL = 12, 16, 20, 24, 28
    srd(a, SRD_EA, 4, 5, E * 8)
    srd(a, SRD_SRC, 6, 7, E * 4)
    srd(a, SRD_DST, 8, 9, E * 4)
    srd(a, SRD_REC, 10, 11, E * 16, WS_REC)
    srd(a, SRD_CELL, 10, 11, NTILE * NBIN * 4, WS_CELL)
    sWave, sOff4, sOff4b, sOff8, sOff8b, sM, sTmp = 32, 33, 34, 35, 36, 37, 38
    sEx = 40
    a(f's_mul_i32 s{sOff4}, s2, {TILE*4}', 'tile byte base in dst / src')
    a(f's_add_u32 s{sOff4b}, s{sOff4}, 8192')
    a(f's_lshl_b32 s{sOff8}, s{sOff4}, 1', 'tile byte base in e_attr')
    a(f's_add_u32 s{sOff8b}, s{sOff8}, 16384')
    a(f's_mov_b32 s{sM}, {M25:#x}')
    V = Regs(1, 256)
    vLane = V.alloc()
    vT = V.alloc()
    vT2 = V.alloc()
    vWB = V.alloc()
    a(f'v_lshrrev_b32 v{vT}, 6, v0')
    a(f'v_and_b32 v{vLane}, 63, v0')
    a(f'v_lshlrev_b32 v{vWB}, 12, v{vT}', "LDS byte base of this wave's private histogram (4 KiB each)")
    a(f'v_readfirstlane_b32 s{sWave}, v{vT}')
    vDst = [V.alloc(4, 4), V.alloc(4, 4)]
    vSrc = [V.alloc(4, 4), V.alloc(4, 4)]
    vEa = [V.alloc(8, 4), V.alloc(8, 4)]
    vO16 = V.alloc()
    vO32 = V.alloc()
    a(f'v_lshlrev_b32 v{vO16}, 4, v0')
    a(f'v_lshlrev_b32 v{vO32}, 5, v0')
    a(f'buffer_load_dwordx4 {vr(vDst[0],4)}, v{vO16}, s[{SRD_DST}:{SRD_DST+3}], s{sOff4} offen')
    a(f'buffer_load_dwordx4 {vr(vSrc[0],4)}, v{vO16}, s[{SRD_SRC}:{SRD_SRC+3}], s{sOff4} offen')
    a(f'buffer_load_dwordx4 {vr(vEa[0],4)}, v{vO32}, s[{SRD_EA}:{SRD_EA+3}], s{sOff8} offen')
    a(f'buffer_load_dwordx4 {vr(vEa[0]+4,4)}, v{vO32}, s[{SRD_EA}:{SRD_EA+3}], s{sOff8} offen offset:16')
    NQ2 = TILE // 4 - 512
    a(f'v_cmp_gt_u32 vcc, {NQ2}, v0')
    a(f's_and_saveexec_b64 s[{sEx}:{sEx+1}], vcc')
    skip1 = a.newlabel('L_part_sk')
    a(f's_cbranch_execz {skip1}')
    a(f'buffer_load_dwordx4 {vr(vDst[1],4)}, v{vO16}, s[{SRD_DST}:{SRD_DST+3}], s{sOff4b} offen')
    a(f'buffer_load_dwordx4 {vr(vSrc[1],4)}, v{vO16}, s[{SRD_SRC}:{SRD_SRC+3}], s{sOff4b} offen')
    a(f'buffer_load_dwordx4 {vr(vEa[1],4)}, v{vO32}, s[{SRD_EA}:{SRD_EA+3}], s{sOff8b} offen')
    a(f'buffer_load_dwordx4 {vr(vEa[1]+4,4)}, v{vO32}, s[{SRD_EA}:{SRD_EA+3}], s{sOff8b} offen offset:16')
    a.label(skip1)
    a(f's_mov_b64 exec, s[{sEx}:{sEx+1}]')
    vZ = V.alloc(4, 4)
    vZA = V.alloc()
    for i in range(4):
        a(f'v_mov_b32 v{vZ+i}, 0')
    a(f'v_lshlrev_b32 v{vZA}, 6, v0')
    for i in range(4):
        a(f'ds_write_b128 v{vZA}, {vr(vZ,4)} offset:{16*i}')
    a('s_waitcnt lgkmcnt(0)')
    a('s_barrier')
    vA = [V.alloc() for _ in range(8)]
    vSh = [V.alloc() for _ in range(8)]
    vDl = [V.alloc() for _ in range(8)]
    vRk = [V.alloc() for _ in range(8)]
    vInc = V.alloc()

    def hist(half):
        for k in range(4):
            e = half * 4 + k
            d = vDst[half] + k
            a(f'v_mul_hi_u32 v{vT}, v{d}, s{sM}', 'window = dst / 25')
            a(f'v_mul_u32_u24 v{vT2}, {WIN}, v{vT}')
            a(f'v_sub_u32 v{vDl[e]}, v{d}, v{vT2}')
            a(f'v_and_b32 v{vT2}, 1, v{vT}')
            a(f'v_lshlrev_b32 v{vSh[e]}, 4, v{vT2}')
            a(f'v_and_b32 v{vT}, -2, v{vT}')
            a(f'v_lshl_add_u32 v{vA[e]}, v{vT}, 1, v{vWB}')
            a(f'v_lshlrev_b32_e64 v{vInc}, v{vSh[e]}, 1')
            a(f'ds_add_rtn_u32 v{vRk[e]}, v{vA[e]}, v{vInc}')
    a('s_waitcnt vmcnt(0)')
    hist(0)
    a(f'v_cmp_gt_u32 vcc, {NQ2}, v0')
    a(f's_and_saveexec_b64 s[{sEx}:{sEx+1}], vcc')
    skip2 = a.newlabel('L_part_sk')
    a(f's_cbranch_execz {skip2}')
    hist(1)
    a.label(skip2)
    a(f's_mov_b64 exec, s[{sEx}:{sEx+1}]')
    a('s_waitcnt lgkmcnt(0)')
    for e in range(8):
        a(f'v_lshrrev_b32 v{vRk[e]}, v{vSh[e]}, v{vRk[e]}')
        a(f'v_and_b32 v{vRk[e]}, 0xffff, v{vRk[e]}')
    a('s_barrier')
    vC = [V.alloc(2, 2) for _ in range(8)]
    vSA = V.alloc()
    a(f'v_lshlrev_b32 v{vSA}, 3, v0')
    for w in range(8):
        a(f'ds_read_b64 {vr(vC[w],2)}, v{vSA} offset:{4096*w}')
    a('s_waitcnt lgkmcnt(0)')
    vP = [V.alloc(2, 2) for _ in range(9)]
    a(f'v_mov_b32 v{vP[0]}, 0')
    a(f'v_mov_b32 v{vP[0]+1}, 0')
    for w in range(8):
        a(f'v_add_u32 v{vP[w+1]}, v{vP[w]}, v{vC[w]}')
        a(f'v_add_u32 v{vP[w+1]+1}, v{vP[w]+1}, v{vC[w]+1}')
    vTot = V.alloc(4, 4)
    vSt = V.alloc(4, 4)
    vX = V.alloc()
    vTT = V.alloc()
    a(f'v_and_b32 v{vTot}, 0xffff, v{vP[8]}')
    a(f'v_lshrrev_b32 v{vTot+1}, 16, v{vP[8]}')
    a(f'v_and_b32 v{vTot+2}, 0xffff, v{vP[8]+1}')
    a(f'v_lshrrev_b32 v{vTot+3}, 16, v{vP[8]+1}')
    a(f'v_add3_u32 v{vTT}, v{vTot}, v{vTot+1}, v{vTot+2}')
    a(f'v_add_u32 v{vTT}, v{vTT}, v{vTot+3}')
    a(f'v_mov_b32 v{vX}, v{vTT}')
    wave_incl_scan(a, vX)
    a(f'v_readlane_b32 s{sTmp}, v{vX}, 63', 'wave total')
    a(f'v_sub_u32 v{vX}, v{vX}, v{vTT}', 'exclusive prefix inside the wave')
    a(f's_lshl_b32 s{sTmp+1}, s{sWave}, 2')
    a(f'v_mov_b32 v{vT}, s{sTmp}')
    a(f'v_mov_b32 v{vT2}, s{sTmp+1}')
    a(f'ds_write_b32 v{vT2}, v{vT} offset:32768')
    a('s_waitcnt lgkmcnt(0)')
    a('s_barrier')
    vW = V.alloc(8, 4)
    a(f'v_mov_b32 v{vT}, 0')
    a(f'ds_read_b128 {vr(vW,4)}, v{vT} offset:32768')
    a(f'ds_read_b128 {vr(vW+4,4)}, v{vT} offset:32784')
    a('s_waitcnt lgkmcnt(0)')
    for w in range(7):
        a(f's_cmp_gt_u32 s{sWave}, {w}')
        a(f's_cselect_b32 s{sTmp}, -1, 0')
        a(f'v_and_b32 v{vT}, s{sTmp}, v{vW+w}')
        a(f'v_add_u32 v{vX}, v{vX}, v{vT}')
    a(f'v_mov_b32 v{vSt}, v{vX}')
    a(f'v_add_u32 v{vSt+1}, v{vSt}, v{vTot}')
    a(f'v_add_u32 v{vSt+2}, v{vSt+1}, v{vTot+1}')
    a(f'v_add_u32 v{vSt+3}, v{vSt+2}, v{vTot+2}')
    vCell = V.alloc(4, 4)
    for k in range(4):
        a(f'v_lshl_or_b32 v{vCell+k}, v{vTot+k}, 16, v{vSt+k}')
    a(f's_lshl_b32 s{sTmp}, s2, {(NBIN*4).bit_length()-1}', 'tile row of the cell table')
    a(f'buffer_store_dwordx4 {vr(vCell,4)}, v{vO16}, s[{SRD_CELL}:{SRD_CELL+3}], s{sTmp} offen')
    vS0 = V.alloc(2, 2)
    a(f'v_lshl_or_b32 v{vS0}, v{vSt+1}, 16, v{vSt}')
    a(f'v_lshl_or_b32 v{vS0+1}, v{vSt+3}, 16, v{vSt+2}')
    for w in range(8):
        a(f'v_add_u32 v{vP[w]}, v{vP[w]}, v{vS0}')
        a(f'v_add_u32 v{vP[w]+1}, v{vP[w]+1}, v{vS0+1}')
        a(f'ds_write_b64 v{vSA}, {vr(vP[w],2)} offset:{4096*w}')
    a('s_waitcnt lgkmcnt(0)')
    a('s_barrier')
    a(f's_mul_i32 s{sTmp}, s2, {TILE*16}', 'tile byte base in the record array')
    vB = [V.alloc() for _ in range(8)]
    vRec = [V.alloc(4, 4) for _ in range(4)]

    def place(half):
        for k in range(4):
            e = half * 4 + k
            a(f'v_lshrrev_b32 v{vT}, 3, v{vSh[e]}')
            a(f'v_add_u32 v{vT}, v{vA[e]}, v{vT}')
            a(f'ds_read_u16 v{vB[e]}, v{vT}')
        a('s_waitcnt lgkmcnt(0)')
        for k in range(4):
            e = half * 4 + k
            q = vRec[k]
            a(f'v_add_u32 v{vB[e]}, v{vB[e]}, v{vRk[e]}')
            a(f'v_lshlrev_b32 v{vB[e]}, 4, v{vB[e]}')
            a(f'v_lshlrev_b32 v{q}, 7, v{vSrc[half]+k}', 'byte offset of x[src]')
            a(f'v_lshlrev_b32 v{q+1}, 4, v{vDl[e]}')
            a(f'v_mov_b32 v{q+2}, v{vEa[half]+2*k}')
            a(f'v_mov_b32 v{q+3}, v{vEa[half]+2*k+1}')
            a(f'buffer_store_dwordx4 {vr(q,4)}, v{vB[e]}, s[{SRD_REC}:{SRD_REC+3}], s{sTmp} offen')
    place(0)
    a(f'v_cmp_gt_u32 vcc, {NQ2}, v0')
    a(f's_and_saveexec_b64 s[{sEx}:{sEx+1}], vcc')
    a('s_cbranch_execz L_part_end')
    a('s_nop 1')
    place(1)
    a('s_branch L_part_end')

    a.label('L_part_weights')
    a('s_load_dwordx4 s[12:15], s[0:1], 32', 'w_a, w_b')
    a('s_load_dwordx2 s[16:17], s[0:1], 48', 'w_c')
    a('s_load_dwordx4 s[20:23], s[0:1], 56', 'w_u, w_v')
    a('s_waitcnt lgkmcnt(0)')
    srd(a, 24, 10, 11, 65536, WS_WF)
    mats = {0: (14, 15), 1: (22, 23), 2: (12, 13), 3: (20, 21)}
    W = Regs(1, 128)
    wL = W.alloc()
    wN = W.alloc()
    wH = W.alloc()
    wA = W.alloc()
    wO = W.alloc()
    wT = W.alloc()
    wE = W.alloc(8)
    wQ = W.alloc(4, 4)
    a(f'v_and_b32 v{wL}, 63, v0')
    a(f'v_and_b32 v{wN}, 31, v0')
    a(f'v_bfe_u32 v{wH}, v0, 5, 1')
    a(f'v_lshrrev_b32 v{wT}, 6, v0', 'wave = (tile t, kstep) selector')
    a('s_nop 0')
    a(f'v_readfirstlane_b32 s32, v{wT}')
    a('s_and_b32 s33, s32, 1')
    a('s_lshr_b32 s34, s32, 1')
    a(f'v_lshlrev_b32 v{wA}, 2, v{wN}', '4 n')
    a(f'v_lshl_add_u32 v{wA}, v{wH}, 10, v{wA}', '+ 8 h rows')
    a('s_lshl_b32 s35, s34, 11', '16 s rows')
    a('s_lshl_b32 s36, s33, 1')
    a('s_add_u32 s35, s35, s36')
    a(f'v_lshlrev_b32 v{wO}, 4, v{wL}')
    for m in range(4):
        lo, hi = mats[m]
        srd(a, 28, lo, hi, D * D * 2)
        for j in range(8):
            a(f'buffer_load_ushort v{wE+j}, v{wA}, s[28:31], s35 offen offset:{128*j}')
        a('s_waitcnt vmcnt(0)')
        for q in range(4):
            a(f'v_lshl_or_b32 v{wQ+q}, v{wE+2*q+1}, 16, v{wE+2*q}')
        a('s_lshl_b32 s36, s33, 12')
        a('s_lshl_b32 s37, s34, 10')
        a('s_add_u32 s36, s36, s37')
        a(f's_add_u32 s36, s36, {m*8192}')
        a(f'buffer_store_dwordx4 {vr(wQ,4)}, v{wO}, s[24:27], s36 offen')
        a('s_nop 1')
    a('s_cmp_gt_u32 s32, 1')
    a('s_cbranch_scc1 L_part_end')
    srd(a, 28, 16, 17, DE * D * 2)
    a(f'v_cmp_gt_u32 vcc, 32, v{wL}')
    a('s_and_saveexec_b64 s[40:41], vcc')
    a(f'v_lshlrev_b32 v{wA}, 2, v{wN}')
    a('s_lshl_b32 s35, s33, 1')
    for j in range(4):
        a(f'buffer_load_ushort v{wE+j}, v{wA}, s[28:31], s35 offen offset:{128*j}')
    a('s_waitcnt vmcnt(0)')
    a(f'v_lshl_or_b32 v{wQ}, v{wE+1}, 16, v{wE}')
    a(f'v_lshl_or_b32 v{wQ+1}, v{wE+3}, 16, v{wE+2}')
    a(f'v_lshlrev_b32 v{wO}, 3, v{wN}')
    a('s_lshl_b32 s36, s33, 8')
    a(f's_add_u32 s36, s36, {WS_WC}')
    a(f'buffer_store_dwordx2 {vr(wQ,2)}, v{wO}, s[24:27], s36 offen')
    a.label('L_part_end')
    a('s_endpgm')
    nv = max(V.high, W.high)
    return a.text(), kernel_descriptor(NAME, nv, 48), nv


if __name__ == '__main__':
    t, d, nv = gen()
    print('vgprs', nv, 'lines', t.count('\n'))
```

```python
N = 50000
D = 64
E = 800000
DE = 4
WIN = 25
NWIN = N // WIN
NBIN = 2048
TILE = 3200
NTILE = E // TILE
M25 = 171798692

WS_WF = 0
WS_WC = 32768
WS_CELL = 65536
WS_REC = WS_CELL + NTILE * NBIN * 4
assert WS_REC % 16 == 0
WS_END = WS_REC + E * 16
```

```python
import sys, importlib
import gen_part
from layout import *

HEADER = '''; Kernarg layout for this problem (96 bytes, ptrs only, base s[0:1]):
'''

def build(out_path, with_main=True):
    p_text, p_desc, p_nv = gen_part.gen()
    launches = [f'; @launch kernel={gen_part.NAME} grid=({NTILE+1},1,1) block=(512,1,1) lds={gen_part.LDS}']
    body = p_text
    descs = p_desc
    if with_main:
        import gen_main
        m_text, m_desc, m_info = gen_main.gen()
        launches.append(f'; @launch kernel={gen_main.NAME} grid=({m_info["grid"]},1,1) block=({m_info["block"]},1,1) lds={m_info["lds"]}')
        body += m_text
        descs += '.p2align 6\n' + m_desc
    txt = HEADER + '\n'.join(launches) + '\n'
    txt += '.amdgcn_target "amdgcn-amd-amdhsa--gfx950"\n.text\n' + body
    txt += '.section .rodata,"a"\n.p2align 6\n' + descs
    open(out_path, 'w').write(txt)
    return txt

if __name__ == '__main__':
    out = sys.argv[1] if len(sys.argv) > 1 else 'k.s'
    wm = '--nomain' not in sys.argv
    build(out, wm)
    print('wrote', out)
```

```python
from asmlib import *
from layout import *
import sched
from sched import R

NAME = 'gs_main_kernel'
NWAVE = 8
CAP = 512
CAPR = CAP + 64
LDS_WF = 0
LDS_OHT = 16384
LDS_WAVE0 = 18432
PW_REC = 0
PW_OWN = CAPR * 16
PW_ST = PW_OWN + CAP * 4
PW = PW_ST + 2048
LDS_TOTAL = LDS_WAVE0 + NWAVE * PW
PAD_SRC = 0x7FFFFF00
PAD_DL16 = 31 * 16
NLOG2E = 0xbfb8aa3b

PIPELINED = True
MPOS = [2, 9, 16, 23, 30, 36, 43, 50, 57, 64, 71, 78, 85, 91]


def gen():
    a = Asm()
    kernel_header(a, NAME)
    SRD_X, SRD_OUT, SRD_WF, SRD_CELL, SRD_REC = 8, 12, 16, 20, 24
    sWave, sWin, sT0, sT1, sT2, sTot, sC0, sNrec, sNg, sG = 32, 33, 34, 35, 36, 37, 38, 39, 40, 41
    sEx = 42
    sLoMask = 44
    sHiMask = 46
    sEx2 = 48
    a(f's_cmp_ge_u32 s2, {NWIN // NWAVE}')
    a('s_cbranch_scc1 L_main_end', 'surplus workgroups leave before touching memory')
    a('s_load_dwordx2 s[4:5], s[0:1], 0', 'x')
    a('s_load_dwordx2 s[6:7], s[0:1], 88', 'd_ws')
    a('s_load_dwordx2 s[28:29], s[0:1], 72', 'd_out')
    a('s_waitcnt lgkmcnt(0)')
    srd(a, SRD_X, 4, 5, N * D * 2)
    srd(a, SRD_OUT, 28, 29, N * D * 2)
    srd(a, SRD_WF, 6, 7, 65536, WS_WF)
    srd(a, SRD_CELL, 6, 7, NTILE * NBIN * 4, WS_CELL)
    srd(a, SRD_REC, 6, 7, E * 16, WS_REC)
    a(f's_mov_b32 s{sLoMask}, -1')
    a(f's_mov_b32 s{sLoMask+1}, 0')
    a(f's_mov_b32 s{sHiMask}, 0')
    a(f's_mov_b32 s{sHiMask+1}, -1')

    V = Regs(1, 256)
    vLane = V.alloc(); vM = V.alloc(); vH16 = V.alloc(); vOHL = V.alloc(); vSC = V.alloc(); vSR = V.alloc()
    vRA = V.alloc(); vWL = V.alloc(); vSold = V.alloc(); vOne = V.alloc(); vZero = V.alloc(); vOwnA = V.alloc()
    vT = V.alloc(); vT2 = V.alloc(); vT3 = V.alloc(); vT4 = V.alloc()
    vR = V.alloc(2, 2)
    vSb = V.alloc()
    vTx = V.alloc()
    vTOH = V.alloc()
    DEN = [V.alloc(16, 4), V.alloc(16, 4)]
    NUM = [V.alloc(16, 4), V.alloc(16, 4)]
    G = [V.alloc(16, 4), V.alloc(16, 4)]
    H = [V.alloc(16, 4), V.alloc(16, 4)]
    AB = [[V.alloc(4, 4), V.alloc(4, 4)], [V.alloc(4, 4), V.alloc(4, 4)]]
    XA = [V.alloc(16, 4), V.alloc(16, 4)]
    OH = [V.alloc(4, 4), V.alloc(4, 4)]
    S = [V.alloc(4, 4), V.alloc(4, 4)]
    WS = [V.alloc(4, 4) for _ in range(4)]

    a(f'v_and_b32 v{vLane}, 63, v0')
    a(f'v_lshrrev_b32 v{vT}, 6, v0')
    a(f'v_and_b32 v{vM}, 31, v0')
    a(f'v_readfirstlane_b32 s{sWave}, v{vT}')
    a(f'v_bfe_u32 v{vT}, v0, 5, 1', 'h = lane >> 5')
    a(f'v_lshlrev_b32 v{vH16}, 4, v{vT}')
    a(f'v_lshlrev_b32 v{vOHL}, 9, v{vT}')
    a(f'v_add_u32 v{vOHL}, {LDS_OHT}, v{vOHL}')
    a(f'v_lshlrev_b32 v{vWL}, 4, v{vLane}')
    a(f's_mul_i32 s{sT0}, s{sWave}, {PW}')
    a(f's_add_u32 s{sT0}, s{sT0}, {LDS_WAVE0}', 'LDS base of this wave\'s private area')
    a(f's_lshl_b32 s{sWin}, s2, 3')
    a(f's_add_u32 s{sWin}, s{sWin}, s{sWave}', 'window index')
    a(f'v_lshlrev_b32 v{vRA}, 4, v{vM}')
    a(f'v_add_u32 v{vRA}, s{sT0}, v{vRA}')
    if PW_REC: a(f'v_add_u32 v{vRA}, {PW_REC}, v{vRA}')
    a(f'v_lshlrev_b32 v{vOwnA}, 2, v{vLane}')
    a(f'v_add_u32 v{vOwnA}, s{sT0}, v{vOwnA}')
    a(f'v_add_u32 v{vOwnA}, {PW_OWN}, v{vOwnA}')
    a(f'v_lshlrev_b32 v{vSR}, 6, v{vM}')
    a(f'v_add_u32 v{vSR}, v{vSR}, v{vH16}')
    a(f'v_add_u32 v{vSR}, s{sT0}, v{vSR}')
    a(f'v_add_u32 v{vSR}, {PW_ST}, v{vSR}')
    a(f'v_lshrrev_b32 v{vT}, 4, v{vM}')
    a(f'v_lshlrev_b32 v{vSC}, 4, v{vT}')
    a(f'v_bfe_u32 v{vT}, v{vM}, 2, 1')
    a(f'v_lshl_add_u32 v{vSC}, v{vT}, 3, v{vSC}')
    a(f'v_bfe_u32 v{vT}, v{vM}, 3, 1')
    a(f'v_lshl_add_u32 v{vSC}, v{vT}, 2, v{vSC}')
    a(f'v_and_b32 v{vT}, 3, v{vM}')
    a(f'v_add_u32 v{vSC}, v{vSC}, v{vT}')
    a(f'v_lshlrev_b32 v{vSC}, 1, v{vSC}')
    a(f'v_add_u32 v{vSC}, s{sT0}, v{vSC}')
    a(f'v_add_u32 v{vSC}, {PW_ST}, v{vSC}')
    a(f'v_mov_b32 v{vSold}, v{vSC}')
    a(f'v_mov_b32 v{vSb}, v{vSC}')
    a(f'v_mov_b32 v{vOne}, 0x3f80')
    a(f'v_mov_b32 v{vZero}, 0')

    a(f'v_lshlrev_b32 v{vT}, 5, v0')
    a(f'buffer_load_dwordx4 {vr(XA[0],4)}, v{vT}, s[{SRD_WF}:{SRD_WF+3}], 0 offen')
    a(f'buffer_load_dwordx4 {vr(XA[0]+4,4)}, v{vT}, s[{SRD_WF}:{SRD_WF+3}], 0 offen offset:16')
    vC = [XA[1] + r for r in range(4)]
    a(f'v_lshlrev_b32 v{vT2}, 13, v{vLane}', 'tile row stride 8 KiB')
    a(f's_lshl_b32 s{sT1}, s{sWin}, 2')
    for r in range(4):
        a(f'buffer_load_dword v{vC[r]}, v{vT2}, s[{SRD_CELL}:{SRD_CELL+3}], s{sT1} offen')
        if r < 3: a(f's_add_u32 s{sT1}, s{sT1}, {64 * NBIN * 4}')
    a(f'v_lshrrev_b32 v{vT}, 8, v0', 's')
    a(f'v_bfe_u32 v{vT2}, v0, 7, 1', 'h')
    a(f'v_lshlrev_b32 v{vT3}, 4, v{vT}')
    a(f'v_lshl_add_u32 v{vT3}, v{vT2}, 2, v{vT3}')
    a(f'v_bfe_u32 v{vT}, v0, 1, 1', 'q >> 1')
    a(f'v_lshl_add_u32 v{vT3}, v{vT}, 3, v{vT3}')
    a(f'v_and_b32 v{vT}, 1, v0', 'q & 1')
    a(f'v_lshl_add_u32 v{vT3}, v{vT}, 1, v{vT3}', 'node of slot 2q')
    a(f'v_bfe_u32 v{vT2}, v0, 2, 5', 'dl')
    a(f'v_sub_u32 v{vT2}, v{vT2}, v{vT3}', 'dl - node0: 0 -> low half, 1 -> high half')
    a(f'v_cmp_eq_u32_e64 s[{sEx}:{sEx+1}], 0, v{vT2}')
    a(f'v_cmp_eq_u32_e64 s[{sEx2}:{sEx2+1}], 1, v{vT2}')
    a(f'v_mov_b32 v{vT}, 0x3f80')
    a(f'v_mov_b32 v{vT3}, 0x3f800000')
    a('s_nop 1')
    a(f'v_cndmask_b32_e64 v{vT}, 0, v{vT}, s[{sEx}:{sEx+1}]')
    a(f'v_cndmask_b32_e64 v{vT3}, 0, v{vT3}, s[{sEx2}:{sEx2+1}]')
    a(f'v_or_b32 v{vT}, v{vT}, v{vT3}')
    a(f'v_lshlrev_b32 v{vT2}, 2, v0')
    a(f'ds_write_b32 v{vT2}, v{vT} offset:{LDS_OHT}')
    for i in range(4): a(f'v_mov_b32 v{S[0]+i}, 0')
    a(f'v_lshlrev_b32 v{vT}, 5, v{vLane}')
    a(f'v_add_u32 v{vT}, s{sT0}, v{vT}')
    a(f'v_add_u32 v{vT}, {PW_ST}, v{vT}')
    a(f'ds_write_b128 v{vT}, {vr(S[0],4)}')
    a(f'ds_write_b128 v{vT}, {vr(S[0],4)} offset:16')
    a('s_waitcnt vmcnt(4)')
    a(f'v_lshlrev_b32 v{vT}, 5, v0')
    a(f'ds_write_b128 v{vT}, {vr(XA[0],4)} offset:{LDS_WF}')
    a(f'ds_write_b128 v{vT}, {vr(XA[0]+4,4)} offset:{LDS_WF+16}')
    a('s_waitcnt lgkmcnt(0)')
    a('s_barrier')

    a('s_waitcnt vmcnt(0)')
    vCnt = [V.alloc() for _ in range(4)]
    vPos = [V.alloc() for _ in range(4)]
    vGi = [V.alloc() for _ in range(4)]
    vX = V.alloc(); vSum = V.alloc()
    for r in range(4):
        a(f'v_lshrrev_b32 v{vCnt[r]}, 16, v{vC[r]}')
        a(f'v_and_b32 v{vGi[r]}, 0xffff, v{vC[r]}')
        a(f'v_add_u32 v{vT}, {64*r}, v{vLane}')
        a(f'v_mul_u32_u24 v{vT}, {TILE}, v{vT}')
        a(f'v_add_u32 v{vGi[r]}, v{vGi[r]}, v{vT}', 'global index of the cell\'s first record')
    a(f'v_add_u32 v{vSum}, v{vCnt[0]}, v{vCnt[1]}')
    a(f'v_add3_u32 v{vSum}, v{vSum}, v{vCnt[2]}, v{vCnt[3]}')
    a(f'v_mov_b32 v{vX}, v{vSum}')
    wave_incl_scan(a, vX)
    a(f'v_readlane_b32 s{sTot}, v{vX}, 63')
    a(f'v_sub_u32 v{vPos[0]}, v{vX}, v{vSum}')
    for r in range(1, 4):
        a(f'v_add_u32 v{vPos[r]}, v{vPos[r-1]}, v{vCnt[r-1]}')

    XW = XA[0]
    def load_window_rows():
        for i in range(16): a(f'v_mov_b32 v{XW+i}, 0')
        a(f's_mul_i32 s{sT1}, s{sWin}, {WIN*128}')
        a(f'v_lshl_add_u32 v{vT}, v{vM}, 7, v{vH16}')
        a(f'v_cmp_gt_u32_e64 s[{sEx}:{sEx+1}], {WIN}, v{vM}')
        a(f's_mov_b64 exec, s[{sEx}:{sEx+1}]')
        for s in range(4):
            a(f'buffer_load_dwordx4 {vr(XW+4*s,4)}, v{vT}, s[{SRD_X}:{SRD_X+3}], s{sT1} offen offset:{32*s}')
        a('s_mov_b64 exec, -1')
    def load_frags(mat):
        for t in range(2):
            for s in range(4):
                a(f's_mov_b32 s{sT2}, {((mat*2+t)*4+s)*1024}')
                a(f'buffer_load_dwordx4 {vr(H[t]+4*s,4)}, v{vWL}, s[{SRD_WF}:{SRD_WF+3}], s{sT2} offen')
    load_window_rows()
    load_frags(2)
    a('s_waitcnt vmcnt(0)')
    for t in range(2):
        for s in range(4):
            c = '0' if s == 0 else vr(G[t], 16)
            a(f'v_mfma_f32_32x32x16_bf16 {vr(G[t],16)}, {vr(XW+4*s,4)}, {vr(H[t]+4*s,4)}, {c}')
    a('s_nop 7'); a('s_nop 7')
    for t in range(2):
        for sp in range(2):
            for q in range(4):
                a(f'v_cvt_pk_bf16_f32 v{AB[t][sp]+q}, v{G[t]+8*sp+2*q}, v{G[t]+8*sp+2*q+1}')
    a('s_nop 1')
    a(f's_mov_b64 exec, s[{sHiMask}:{sHiMask+1}]')
    a(f'v_lshlrev_b32 v{vT}, 3, v{vM}')
    for t in range(2):
        a(f's_mov_b32 s{sT2}, {WS_WC + 256*t}')
        a(f'buffer_load_dwordx2 {vr(AB[t][1]+2,2)}, v{vT}, s[{SRD_WF}:{SRD_WF+3}], s{sT2} offen')
    a('s_mov_b64 exec, -1')
    for t in range(2):
        for i in range(16):
            a(f'v_mov_b32 v{DEN[t]+i}, 0')
            a(f'v_mov_b32 v{NUM[t]+i}, 0')
    a(f's_mov_b32 s{sC0}, 0')

    a.label('L_chunk')
    a(f's_sub_u32 s{sNrec}, s{sTot}, s{sC0}')
    a(f's_min_u32 s{sNrec}, s{sNrec}, {CAP}', 'records in this chunk')
    vK = V.alloc(); vEnd = V.alloc(); vAd = V.alloc(); vDa = V.alloc()
    a(f's_add_u32 s{sT1}, s{sC0}, {CAP}')
    for r in range(4):
        lf = a.newlabel('L_fill'); le = a.newlabel('L_fill_end')
        a(f'v_sub_u32 v{vK}, s{sC0}, v{vPos[r]}')
        a(f'v_max_i32 v{vK}, 0, v{vK}', 'first in-chunk record of the cell')
        a(f'v_sub_u32 v{vEnd}, s{sT1}, v{vPos[r]}')
        a(f'v_min_i32 v{vEnd}, v{vEnd}, v{vCnt[r]}', 'one past the last in-chunk record')
        a(f'v_subrev_u32 v{vAd}, s{sC0}, v{vPos[r]}')
        a(f'v_add_u32 v{vAd}, v{vAd}, v{vK}')
        a(f'v_lshlrev_b32 v{vAd}, 2, v{vAd}')
        a(f'v_add_u32 v{vAd}, s{sT0}, v{vAd}')
        a(f'v_add_u32 v{vAd}, {PW_OWN}, v{vAd}')
        a(f'v_add_u32 v{vDa}, v{vGi[r]}, v{vK}')
        a.label(lf)
        a(f'v_cmp_lt_i32 vcc, v{vK}, v{vEnd}')
        a(f's_and_saveexec_b64 s[{sEx}:{sEx+1}], vcc')
        a(f's_cbranch_execz {le}')
        a(f'ds_write_b32 v{vAd}, v{vDa}')
        a(f'v_add_u32 v{vK}, 1, v{vK}')
        a(f'v_add_u32 v{vAd}, 4, v{vAd}')
        a(f'v_add_u32 v{vDa}, 1, v{vDa}')
        a(f's_mov_b64 exec, s[{sEx}:{sEx+1}]')
        a(f's_branch {lf}')
        a.label(le)
        a(f's_mov_b64 exec, s[{sEx}:{sEx+1}]')
    a('s_waitcnt lgkmcnt(0)')
    NJ = CAPR // 64
    GB = G[0]
    quads = [G[0] + 4*j for j in range(4)] + [G[1] + 4*j for j in range(4)] + [H[0]]
    owns = [H[1] + j for j in range(NJ)]
    for j in range(NJ):
        a(f'ds_read_b32 v{owns[j]}, v{vOwnA} offset:{256*j}')
    a('s_waitcnt lgkmcnt(0)')
    for j in range(NJ):
        q = quads[j]
        a(f'v_mov_b32 v{q}, {PAD_SRC:#x}')
        a(f'v_mov_b32 v{q+1}, {PAD_DL16}')
        a(f'v_mov_b32 v{q+2}, 0')
        a(f'v_mov_b32 v{q+3}, 0')
        a(f'v_lshlrev_b32 v{owns[j]}, 4, v{owns[j]}')
    for j in range(NJ):
        sk = a.newlabel('L_gsk')
        a(f'v_add_u32 v{vT}, {64*j}, v{vLane}')
        a(f'v_cmp_gt_u32 vcc, s{sNrec}, v{vT}')
        a(f's_and_saveexec_b64 s[{sEx}:{sEx+1}], vcc')
        a(f's_cbranch_execz {sk}')
        a(f'buffer_load_dwordx4 {vr(quads[j],4)}, v{owns[j]}, s[{SRD_REC}:{SRD_REC+3}], 0 offen')
        a.label(sk)
        a(f's_mov_b64 exec, s[{sEx}:{sEx+1}]')
    a(f'v_lshlrev_b32 v{vT}, 4, v{vLane}')
    a(f'v_add_u32 v{vT}, s{sT0}, v{vT}')
    a('s_waitcnt vmcnt(0)')
    for j in range(NJ):
        a(f'ds_write_b128 v{vT}, {vr(quads[j],4)} offset:{PW_REC + 1024*j}')
    a('s_waitcnt lgkmcnt(0)')
    a(f's_add_u32 s{sNg}, s{sNrec}, 31')
    a(f's_lshr_b32 s{sNg}, s{sNg}, 5', 'groups in this chunk')

    if PIPELINED:
        vRAc = vT4
        vSx = [vSold, vSb]
        a('s_cmp_eq_u32 s%d, 0' % sNg)
        a('s_cbranch_scc1 L_groups_done')
        a(f'ds_read_b64 {vr(vR,2)}, v{vRA}')
        a(f'ds_write_b16 v{vSx[0]}, v{vZero}')
        a(f'ds_write_b16 v{vSx[1]}, v{vZero}')
        a('s_waitcnt lgkmcnt(0)')
        a(f'v_add_u32 v{vTx}, v{vR}, v{vH16}')
        for s_ in range(4):
            a(f'buffer_load_dwordx4 {vr(XA[0]+4*s_,4)}, v{vTx}, s[{SRD_X}:{SRD_X+3}], 0 offen offset:{32*s_}')
        a(f'v_add_u32 v{vTOH}, v{vR+1}, v{vOHL}')
        a(f'ds_read_b128 {vr(OH[0],4)}, v{vTOH}')
        a(f'ds_read_b128 {vr(OH[1],4)}, v{vTOH} offset:1024')
        a(f's_mov_b64 exec, s[{sHiMask}:{sHiMask+1}]')
        a(f'ds_read_b64 {vr(OH[1]+2,2)}, v{vRA} offset:8')
        a('s_mov_b64 exec, -1')
        a(f'v_lshl_add_u32 v{vSx[0]}, v{vR+1}, 2, v{vSC}')
        a(f'ds_write_b16 v{vSx[0]}, v{vOne}')
        a(f'ds_read_b64 {vr(vR,2)}, v{vRA} offset:512')
        a(f'v_add_u32 v{vRAc}, 512, v{vRA}')
        for i in range(4):
            a(f'v_mov_b32 v{S[0]+i}, 0'); a(f'v_mov_b32 v{S[1]+i}, 0')
        for i in range(8):
            a(f'v_mov_b32 v{G[1]+i}, 0'); a(f'v_mov_b32 v{H[1]+i}, 0')
        a('s_waitcnt lgkmcnt(0)')
        a(f'v_add_u32 v{vTx}, v{vR}, v{vH16}')
        for s_ in range(4):
            a(f'buffer_load_dwordx4 {vr(XA[1]+4*s_,4)}, v{vTx}, s[{SRD_X}:{SRD_X+3}], 0 offen offset:{32*s_}')
        a('s_waitcnt vmcnt(4)')
        a(f'v_mfma_f32_32x32x16_bf16 {vr(G[0],16)}, {vr(OH[0],4)}, {vr(AB[0][0],4)}, 0')
        a(f'v_mfma_f32_32x32x16_bf16 {vr(G[0],16)}, {vr(OH[1],4)}, {vr(AB[0][1],4)}, {vr(G[0],16)}')
        for mat, dstr in ((0, G[0]), (1, H[0])):
            for s_ in range(4):
                a(f'ds_read_b128 {vr(WS[s_],4)}, v{vWL} offset:{LDS_WF + ((mat*2+0)*4+s_)*1024}')
            a('s_waitcnt lgkmcnt(0)')
            for s_ in range(4):
                c = '0' if (mat == 1 and s_ == 0) else vr(dstr, 16)
                a(f'v_mfma_f32_32x32x16_bf16 {vr(dstr,16)}, {vr(XA[0]+4*s_,4)}, {vr(WS[s_],4)}, {c}')
        a('s_nop 7'); a('s_nop 7')
        a(f's_mov_b32 s{sG}, 0')

        def backbone(t):
            g, h = G[t], H[t]
            b = []
            for i in range(16): b.append(sched.valu(f'v_mul_f32 v{g+i}, {NLOG2E:#x}, v{g+i}', R(g+i), R(g+i)))
            for i in range(16): b.append(sched.valu(f'v_exp_f32 v{g+i}, v{g+i}', R(g+i), R(g+i), trans=True))
            for i in range(16): b.append(sched.valu(f'v_add_f32 v{g+i}, 1.0, v{g+i}', R(g+i), R(g+i)))
            for i in range(16): b.append(sched.valu(f'v_rcp_f32 v{g+i}, v{g+i}', R(g+i), R(g+i), trans=True))
            for i in range(16): b.append(sched.valu(f'v_mul_f32 v{h+i}, v{g+i}, v{h+i}', R(g+i) | R(h+i), R(h+i)))
            for q in range(8): b.append(sched.valu(f'v_cvt_pk_bf16_f32 v{g+q}, v{g+2*q}, v{g+2*q+1}', R(g+2*q, 2), R(g+q)))
            for q in range(8): b.append(sched.valu(f'v_cvt_pk_bf16_f32 v{h+q}, v{h+2*q}, v{h+2*q+1}', R(h+2*q, 2), R(h+q)))
            return b

        def slot(te, xbuf, is_a, par, xpre):
            to = 1 - te
            ins = {}
            def put(idx, *items): ins.setdefault(idx, []).extend(items)
            wfr = lambda mat, s_: sched.ds_read(WS[s_], 4, vWL, LDS_WF + ((mat*2+to)*4+s_)*1024)
            m = [sched.mfma(DEN[to], S[0], G[to], DEN[to]), sched.mfma(DEN[to], S[1], G[to]+4, DEN[to]),
                 sched.mfma(NUM[to], S[0], H[to], NUM[to]), sched.mfma(NUM[to], S[1], H[to]+4, NUM[to]),
                 sched.mfma(G[to], OH[0], AB[to][0]), sched.mfma(G[to], OH[1], AB[to][1], G[to])]
            for s_ in range(4): m.append(sched.mfma(G[to], xbuf + 4*s_, WS[s_], G[to]))
            for s_ in range(4): m.append(sched.mfma(H[to], xbuf + 4*s_, WS[s_], None if s_ == 0 else H[to]))
            for k in range(14):
                put(MPOS[k], m[k])
                if 6 <= k <= 9: put(MPOS[k], wfr(1, k - 6))
            for s_ in range(4): put(s_, wfr(0, s_))
            if is_a:
                old, new = vSx[par], vSx[1 - par]
                put(-1, sched.valu(f'v_add_u32 v{vTOH}, v{vR+1}, v{vOHL}', R(vR+1) | R(vOHL), R(vTOH)),
                        sched.valu(f'v_lshl_add_u32 v{new}, v{vR+1}, 2, v{vSC}', R(vR+1) | R(vSC), R(new)))
                put(MPOS[3], sched.ds_read(S[0], 4, vSR), sched.ds_read(S[1], 4, vSR, 32),
                             sched.ds_write_b16(old, vZero), sched.ds_write_b16(new, vOne))
                put(MPOS[5], sched.ds_read(OH[0], 4, vTOH), sched.ds_read(OH[1], 4, vTOH, 1024),
                             sched.salu(f's_mov_b64 exec, s[{sHiMask}:{sHiMask+1}]'),
                             sched.ds_read(OH[1] + 2, 2, vRAc, 8),
                             sched.salu('s_mov_b64 exec, -1'),
                             sched.ds_read(vR, 2, vRAc, 512),
                             sched.valu(f'v_add_u32 v{vRAc}, 512, v{vRAc}', R(vRAc), R(vRAc)))
            else:
                put(4, sched.valu(f'v_add_u32 v{vTx}, v{vR}, v{vH16}', R(vR) | R(vH16), R(vTx)))
                put(5, *[sched.buf_load_x4(xpre + 4*s_, vTx, SRD_X, 32*s_) for s_ in range(4)])
            return sched.merge(backbone(te), ins)

        body = []
        for par in range(2):
            It = sched.I
            body += slot(0, XA[par], True, par, None)
            body += slot(1, XA[1 - par], False, par, XA[par])
            body += [sched.salu(f's_add_u32 s{sG}, s{sG}, 1'), sched.salu(f's_cmp_ge_u32 s{sG}, s{sNg}'),
                     sched.salu('s_cbranch_scc1 L_drain')]
        bodyw, _ = sched.steady_state_body(body)
        probs = sched.verify_hazards(bodyw)
        assert not probs, '\n'.join(probs[:20])
        a.label('L_group')
        for ins_ in bodyw: a(ins_.text)
        a('s_branch L_group')
        a.label('L_drain')
        a('s_waitcnt vmcnt(0) lgkmcnt(0)')
        a(f'v_mfma_f32_32x32x16_bf16 {vr(DEN[1],16)}, {vr(S[0],4)}, {vr(G[1],4)}, {vr(DEN[1],16)}')
        a(f'v_mfma_f32_32x32x16_bf16 {vr(DEN[1],16)}, {vr(S[1],4)}, {vr(G[1]+4,4)}, {vr(DEN[1],16)}')
        a(f'v_mfma_f32_32x32x16_bf16 {vr(NUM[1],16)}, {vr(S[0],4)}, {vr(H[1],4)}, {vr(NUM[1],16)}')
        a(f'v_mfma_f32_32x32x16_bf16 {vr(NUM[1],16)}, {vr(S[1],4)}, {vr(H[1]+4,4)}, {vr(NUM[1],16)}')
        a('s_nop 7'); a('s_nop 7')
    else:
        a(f's_mov_b32 s{sG}, 0')
        a(f'v_mov_b32 v{vT4}, v{vRA}', 'running record address')
        a('s_cmp_eq_u32 s%d, 0' % sNg)
        a('s_cbranch_scc1 L_groups_done')
        a.label('L_group')
        a(f'ds_read_b64 {vr(vR,2)}, v{vT4}')
        a('s_waitcnt lgkmcnt(0)')
        a(f'v_add_u32 v{vT}, v{vR}, v{vH16}')
        for s in range(4):
            a(f'buffer_load_dwordx4 {vr(XA[0]+4*s,4)}, v{vT}, s[{SRD_X}:{SRD_X+3}], 0 offen offset:{32*s}')
        a(f'v_add_u32 v{vT2}, v{vR+1}, v{vOHL}')
        a(f'ds_read_b128 {vr(OH[0],4)}, v{vT2}')
        a(f'ds_read_b128 {vr(OH[1],4)}, v{vT2} offset:1024')
        a(f's_mov_b64 exec, s[{sHiMask}:{sHiMask+1}]')
        a(f'ds_read_b64 {vr(OH[1]+2,2)}, v{vT4} offset:8')
        a(f's_mov_b64 exec, s[{sLoMask}:{sLoMask+1}]')
        a(f'v_lshl_add_u32 v{vT3}, v{vR+1}, 2, v{vSC}', 'selection-tile address of this lane\'s edge')
        a(f'ds_write_b16 v{vSold}, v{vZero}')
        a(f'ds_write_b16 v{vT3}, v{vOne}')
        a(f'v_mov_b32 v{vSold}, v{vT3}')
        a('s_mov_b64 exec, -1')
        a(f'ds_read_b128 {vr(S[0],4)}, v{vSR}')
        a(f'ds_read_b128 {vr(S[1],4)}, v{vSR} offset:32')
        a('s_waitcnt vmcnt(0) lgkmcnt(0)')
        for t in range(2):
            a(f'v_mfma_f32_32x32x16_bf16 {vr(G[t],16)}, {vr(OH[0],4)}, {vr(AB[t][0],4)}, 0')
            a(f'v_mfma_f32_32x32x16_bf16 {vr(G[t],16)}, {vr(OH[1],4)}, {vr(AB[t][1],4)}, {vr(G[t],16)}')
            for mat, dstr in ((0, G[t]), (1, H[t])):
                for s in range(4):
                    a(f'ds_read_b128 {vr(WS[s],4)}, v{vWL} offset:{LDS_WF + ((mat*2+t)*4+s)*1024}')
                a('s_waitcnt lgkmcnt(0)')
                for s in range(4):
                    c = '0' if (mat == 1 and s == 0) else vr(dstr, 16)
                    a(f'v_mfma_f32_32x32x16_bf16 {vr(dstr,16)}, {vr(XA[0]+4*s,4)}, {vr(WS[s],4)}, {c}')
            a('s_nop 7'); a('s_nop 7')
            g, h = G[t], H[t]
            for i in range(16): a(f'v_mul_f32 v{g+i}, {NLOG2E:#x}, v{g+i}')
            for i in range(16): a(f'v_exp_f32 v{g+i}, v{g+i}')
            for i in range(16): a(f'v_add_f32 v{g+i}, 1.0, v{g+i}')
            for i in range(16): a(f'v_rcp_f32 v{g+i}, v{g+i}')
            for i in range(16): a(f'v_mul_f32 v{h+i}, v{g+i}, v{h+i}')
            for q in range(8): a(f'v_cvt_pk_bf16_f32 v{g+q}, v{g+2*q}, v{g+2*q+1}')
            for q in range(8): a(f'v_cvt_pk_bf16_f32 v{h+q}, v{h+2*q}, v{h+2*q+1}')
            a('s_nop 1')
            for sp in range(2):
                a(f'v_mfma_f32_32x32x16_bf16 {vr(DEN[t],16)}, {vr(S[sp],4)}, {vr(g+4*sp,4)}, {vr(DEN[t],16)}')
            for sp in range(2):
                a(f'v_mfma_f32_32x32x16_bf16 {vr(NUM[t],16)}, {vr(S[sp],4)}, {vr(h+4*sp,4)}, {vr(NUM[t],16)}')
        a(f'v_add_u32 v{vT4}, 512, v{vT4}')
        a(f's_add_u32 s{sG}, s{sG}, 1')
        a(f's_cmp_lt_u32 s{sG}, s{sNg}')
        a('s_cbranch_scc1 L_group')
    a.label('L_groups_done')
    a(f's_add_u32 s{sC0}, s{sC0}, {CAP}')
    a(f's_cmp_lt_u32 s{sC0}, s{sTot}')
    a('s_cbranch_scc1 L_chunk')

    load_window_rows()
    load_frags(3)
    XR = XA[1]
    a(f's_mul_i32 s{sT1}, s{sWin}, {WIN*128}')
    a(f'v_lshlrev_b32 v{vT2}, 2, v{vM}')
    a(f'v_lshl_add_u32 v{vT2}, v{vH16}, 5, v{vT2}', '4h rows * 128 B = h16 * 32')
    for rho in range(13):
        a(f'buffer_load_dword v{XR+rho}, v{vT2}, s[{SRD_X}:{SRD_X+3}], s{sT1} offen offset:{128*(8*(rho>>2) + (rho&3))}')
    a('s_waitcnt vmcnt(0)')
    for t in range(2):
        for s in range(4):
            c = '0' if s == 0 else vr(G[t], 16)
            a(f'v_mfma_f32_32x32x16_bf16 {vr(G[t],16)}, {vr(XW+4*s,4)}, {vr(H[t]+4*s,4)}, {c}')
    a('s_nop 7'); a('s_nop 7')
    a(f'v_mov_b32 v{vT}, 0x358637bd', '1e-6')
    vcm = sEx
    for rho in range(13):
        for t in range(2):
            d, nmr, u = DEN[t] + rho, NUM[t] + rho, G[t] + rho
            a(f'v_add_f32 v{d}, v{vT}, v{d}')
            a(f'v_rcp_f32 v{d}, v{d}')
            a('s_nop 0')
            a(f'v_fma_f32 v{u}, v{nmr}, v{d}, v{u}', 'z')
            a(f'v_mul_f32 v{d}, 0, v{u}')
            a(f'v_cmp_lt_f32_e64 s[{vcm}:{vcm+1}], 0, v{u}')
            a('s_nop 1')
            a(f'v_cndmask_b32_e64 v{u}, v{d}, v{u}, s[{vcm}:{vcm+1}]', 'where(z > 0, z, 0 * z)')
        a(f'v_lshlrev_b32 v{vT3}, 16, v{XR+rho}')
        a(f'v_and_b32 v{XR+rho}, 0xffff0000, v{XR+rho}')
        a(f'v_add_f32 v{vT3}, v{vT3}, v{G[0]+rho}')
        a(f'v_add_f32 v{XR+rho}, v{XR+rho}, v{G[1]+rho}')
        a(f'v_cvt_pk_bf16_f32 v{XR+rho}, v{vT3}, v{XR+rho}')
    for rho in range(13):
        if rho == 12: a(f's_mov_b64 exec, s[{sLoMask}:{sLoMask+1}]')
        a(f'buffer_store_dword v{XR+rho}, v{vT2}, s[{SRD_OUT}:{SRD_OUT+3}], s{sT1} offen offset:{128*(8*(rho>>2) + (rho&3))}')
    a.label('L_main_end')
    a('s_endpgm')
    info = dict(grid=NWIN // NWAVE, block=64 * NWAVE, lds=LDS_TOTAL)
    return a.text(), kernel_descriptor(NAME, V.high, 64), info


if __name__ == '__main__':
    t, d, info = gen()
    print(info, 'lines', t.count('\n'))
    print(d)
```

```python
def R(base, n=1):
    return frozenset(range(base, base + n))


def vr(base, n=1):
    return f'v{base}' if n == 1 else f'v[{base}:{base+n-1}]'


class I:
    __slots__ = ('text', 'kind', 'rd', 'wr', 'a', 'b', 'c', 'tag')

    def __init__(self, text, kind, rd=frozenset(), wr=frozenset(), tag=''):
        self.text = text
        self.kind = kind
        self.rd = frozenset(rd)
        self.wr = frozenset(wr)
        self.a = self.b = self.c = frozenset()
        self.tag = tag

    def __repr__(self):
        return self.text


def valu(text, rd=(), wr=(), trans=False):
    return I(text, 'trans' if trans else 'valu', rd, wr)


def mfma(d, a, b, c=None, tag=''):
    ctext = '0' if c is None else vr(c, 16)
    i = I(f'v_mfma_f32_32x32x16_bf16 {vr(d,16)}, {vr(a,4)}, {vr(b,4)}, {ctext}', 'mfma',
          rd=R(a, 4) | R(b, 4) | (R(c, 16) if c is not None else frozenset()), wr=R(d, 16), tag=tag)
    i.a, i.b = R(a, 4), R(b, 4)
    i.c = R(c, 16) if c is not None else frozenset()
    return i


def ds_read(dst, n, addr, offset=0):
    op = {1: 'ds_read_b32', 2: 'ds_read_b64', 4: 'ds_read_b128'}[n]
    off = f' offset:{offset}' if offset else ''
    return I(f'{op} {vr(dst,n)}, v{addr}{off}', 'dsr', rd=R(addr), wr=R(dst, n))


def ds_write_b16(addr, data):
    return I(f'ds_write_b16 v{addr}, v{data}', 'dsw', rd=R(addr) | R(data))


def buf_load_x4(dst, voff, srd, offset=0):
    off = f' offset:{offset}' if offset else ''
    return I(f'buffer_load_dwordx4 {vr(dst,4)}, v{voff}, s[{srd}:{srd+3}], 0 offen{off}', 'vml', rd=R(voff), wr=R(dst, 4))


def salu(text):
    return I(text, 'salu')


def nop(n):
    return I(f's_nop {n}', 'nop', tag=str(n))


class Counters:
    def __init__(self):
        self.lg = []
        self.vm = []

    def copy(self):
        c = Counters()
        c.lg = list(self.lg)
        c.vm = list(self.vm)
        return c

    def __eq__(self, o):
        return self.lg == o.lg and self.vm == o.vm


def insert_waits(seq, st):
    out = []
    for ins in seq:
        touched = ins.rd | ins.wr
        need_lg = need_vm = None
        t_lg = ins.rd if ins.kind == 'dsr' else touched
        t_vm = ins.rd if ins.kind == 'vml' else touched
        for idx, dst in enumerate(st.lg):
            if dst & t_lg:
                need_lg = idx
        for idx, dst in enumerate(st.vm):
            if dst & t_vm:
                need_vm = idx
        parts = []
        if need_vm is not None:
            n = len(st.vm) - need_vm - 1
            assert n <= 63
            parts.append(f'vmcnt({n})')
            st.vm = st.vm[need_vm + 1:]
        if need_lg is not None:
            n = len(st.lg) - need_lg - 1
            assert n <= 15
            parts.append(f'lgkmcnt({n})')
            st.lg = st.lg[need_lg + 1:]
        if parts:
            out.append(I('s_waitcnt ' + ' '.join(parts), 'wait'))
        if ins.kind in ('dsr', 'dsw'):
            if len(st.lg) >= 15:
                out.append(I('s_waitcnt lgkmcnt(14)', 'wait'))
                st.lg = st.lg[-14:]
            st.lg.append(ins.wr if ins.kind == 'dsr' else frozenset())
        elif ins.kind == 'vml':
            st.vm.append(ins.wr)
        out.append(ins)
    return out, st


def steady_state_body(body):
    st = Counters()
    _, st = insert_waits(body, st)
    s1 = st.copy()
    out2, st = insert_waits(body, st)
    s2 = st.copy()
    out3, st = insert_waits(body, st)
    assert s2 == st, 'counter state does not reach a fixpoint'
    assert [i.text for i in out2] == [i.text for i in out3]
    return out2, s2


def verify_hazards(seq, wrap=True, verbose=False):
    lin = list(seq) + (list(seq) if wrap else [])
    pos = []
    p = 0
    for ins in lin:
        pos.append(p)
        p += (int(ins.tag) + 1) if ins.kind == 'nop' else 1
    problems = []
    last_mfma_w = {}
    last_valu_w = {}
    last_trans_w = {}
    last_mfma_c = {}
    for k, ins in enumerate(lin):
        pk = pos[k]
        if ins.kind in ('valu', 'trans', 'dsr', 'dsw', 'vml'):
            regs = (ins.rd | ins.wr) if ins.kind in ('valu', 'trans') else ins.rd
            for r in regs:
                if r in last_mfma_w and pk - last_mfma_w[r][0] - 1 < 12:
                    problems.append(f'H1 MFMA->{ins.kind} v{r}: distance {pk - last_mfma_w[r][0] - 1} < 12 at [{k}] {ins.text}')
            if ins.kind in ('dsr', 'vml'):
                for r in ins.wr:
                    if r in last_mfma_w and pk - last_mfma_w[r][0] - 1 < 12:
                        problems.append(f'H1b MFMA D overlaps load dest v{r} at [{k}] {ins.text}')
        if ins.kind in ('valu', 'trans'):
            for r in ins.wr:
                if r in last_mfma_c and pk - last_mfma_c[r] - 1 < 7:
                    problems.append(f'H5 MFMA SrcC read -> VALU write v{r}: distance {pk - last_mfma_c[r] - 1} < 7 at [{k}] {ins.text}')
            if ins.kind == 'valu':
                for r in ins.rd:
                    if r in last_trans_w and pk - last_trans_w[r] - 1 < 1:
                        problems.append(f'H6 trans->valu v{r}: distance 0 at [{k}] {ins.text}')
        if ins.kind == 'mfma':
            for r in ins.a | ins.b:
                if r in last_mfma_w and pk - last_mfma_w[r][0] - 1 < 12:
                    problems.append(f'H2 MFMA D->MFMA A/B v{r}: distance {pk - last_mfma_w[r][0] - 1} < 12 at [{k}] {ins.text}')
            for r in ins.c:
                if r in last_mfma_w:
                    same = last_mfma_w[r][1] == ins.c
                    need = 0 if same else 10
                    if pk - last_mfma_w[r][0] - 1 < need:
                        problems.append(f'H3 MFMA D->MFMA C v{r}: distance {pk - last_mfma_w[r][0] - 1} < {need} at [{k}] {ins.text}')
            for r in ins.rd | ins.wr:
                if r in last_valu_w and pk - last_valu_w[r] - 1 < 2:
                    problems.append(f'H4 VALU write->MFMA v{r}: distance {pk - last_valu_w[r] - 1} < 2 at [{k}] {ins.text}')
        if ins.kind == 'mfma':
            for r in ins.wr:
                last_mfma_w[r] = (pk, ins.wr)
            for r in ins.c:
                last_mfma_c[r] = pk
        if ins.kind in ('valu', 'trans'):
            for r in ins.wr:
                last_valu_w[r] = pk
                last_mfma_w.pop(r, None)
                if ins.kind == 'trans':
                    last_trans_w[r] = pk
                else:
                    last_trans_w.pop(r, None)
        if ins.kind in ('dsr', 'vml'):
            for r in ins.wr:
                last_mfma_w.pop(r, None)
                last_valu_w.pop(r, None)
    return problems


def merge(backbone, inserts):
    out = list(inserts.get(-1, []))
    for i, b in enumerate(backbone):
        out.append(b)
        out.extend(inserts.get(i, []))
    return out
```
